```python
import torch

def _softmax(x, axis=-1):
    return torch.softmax(x, dim=axis)

def _gelu(x):
    return torch.nn.functional.gelu(x, approximate='tanh')

def _silu(x):
    return torch.nn.functional.silu(x)

def _sigmoid(x):
    return torch.sigmoid(x)

def _layernorm(x, axis=-1, eps=1e-05):
    m = x.mean(dim=axis, keepdim=True)
    v = x.var(dim=axis, keepdim=True, unbiased=False)
    return (x - m) / torch.sqrt(v + eps)

def _scatter_add(tgt, idx, src, axis=0):
    return tgt.clone().index_add_(axis, idx, src)

def _segment_sum(src, seg, n):
    out = torch.zeros((n,) + src.shape[1:], dtype=src.dtype)
    return out.index_add_(0, seg, src)

def _pad(x, pw):
    flat = tuple((v for pair in reversed(pw) for v in pair))
    return torch.nn.functional.pad(x, flat)
kernel_name = 'adaLN_cond__spectral_gfnet__dense_activation_silu__prompt'

def setup_inputs():

    _w = lambda a: (lambda t: t.to(torch.bfloat16) if t.is_floating_point() else t)(torch.as_tensor(a))

    def _A_setup():
        B, S, D = (1, 2048, 448)
        Df = D // 2 + 1
        return {'x': _w((lambda *s: torch.randn(*s, dtype=torch.bfloat16) * 0.05)(B, S, D)), 'w_r': _w((lambda *s: torch.randn(*s, dtype=torch.bfloat16) * 1.6)(S, Df) * 0.02), 'w_i': _w((lambda *s: torch.randn(*s, dtype=torch.bfloat16) * 1.6)(S, Df) * 0.02)}
    _A_in = _A_setup()

    def _B_setup():
        B, S, D, F = (1, 2048, 448, 1792)
        return {'x': _w((lambda *s: torch.randn(*s, dtype=torch.bfloat16) * 0.05)(B, S, D)), 'w1': _w((lambda *s: torch.randn(*s, dtype=torch.bfloat16) * 0.8)(D, F) * D ** (-0.5)), 'w2': _w((lambda *s: torch.randn(*s, dtype=torch.bfloat16) * 0.2)(F, D) * F ** (-0.5))}
    _B_in = _B_setup()
    return {'A_x': _A_in['x'], 'A_w_r': _A_in['w_r'], 'A_w_i': _A_in['w_i'], 'B_x': _B_in['x'], 'B_w1': _B_in['w1'], 'B_w2': _B_in['w2'], 'c': _w((lambda *s: torch.randn(*s, dtype=torch.bfloat16) * 0.2)(1, 448) * 8.0), 'w_mod': _w((lambda *s: torch.randn(*s, dtype=torch.bfloat16) * 0.2)(448, 6 * 448) * 448 ** (-0.5) * 8.0)}

def reference(A_x, A_w_r, A_w_i, B_x, B_w1, B_w2, c, w_mod):

    def _A_ref(x, w_r, w_i):
        B, S, D = x.shape
        X = (lambda x, axes=(-2, -1): torch.fft.rfft2(x.float(), dim=axes))(x, axes=(-2, -1))
        W = w_r + 1j * w_i
        X = X * W
        y = (lambda x, s, axes=(-2, -1): torch.fft.irfft2(x, s=s, dim=axes).to(torch.bfloat16))(X, (S, D), axes=(-2, -1))
        return y

    def _B_ref(x, w1, w2):
        h = torch.einsum('bsd,df->bsf', x, w1)
        h = _silu(h)
        out = torch.einsum('bsf,fd->bsd', h, w2)
        return out
    x = A_x
    mod = (_silu(c) @ w_mod).reshape(c.shape[0], 6, 1, -1)
    sa, ca, ga, sb, cb, gb = (mod[:, 0].clone(), mod[:, 1].clone(), mod[:, 2].clone(), mod[:, 3].clone(), mod[:, 4].clone(), mod[:, 5].clone())
    h = _layernorm(x, axis=-1) * (1 + ca) + sa
    x = x + ga * _A_ref(h, A_w_r, A_w_i)
    h = _layernorm(x, axis=-1) * (1 + cb) + sb
    x = x + gb * _B_ref(h, B_w1, B_w2)
    return x
```

```python
import re
import struct


def f2u(x):
    return struct.unpack('<I', struct.pack('<f', x))[0]


def fl(x):
    return '0x%08x' % f2u(x)


class Reg:
    def __init__(self, kind, base, n):
        self.kind, self.base, self.n = kind, base, n

    def __getitem__(self, i):
        if isinstance(i, slice):
            a = i.start or 0
            b = self.n if i.stop is None else i.stop
            assert 0 <= a < b <= self.n, (a, b, self.n)
            return Reg(self.kind, self.base + a, b - a)
        assert 0 <= i < self.n, (i, self.n)
        return Reg(self.kind, self.base + i, 1)

    def __str__(self):
        if self.n == 1:
            return '%s%d' % (self.kind, self.base)
        return '%s[%d:%d]' % (self.kind, self.base, self.base + self.n - 1)

    __repr__ = __str__

    def __len__(self):
        return self.n


class Pool:
    def __init__(self, kind, lo, hi):
        self.kind = kind
        self.used = [False] * hi
        for i in range(lo):
            self.used[i] = True
        self.high = lo

    def alloc(self, n=1, align=None):
        if align is None:
            align = 1 if n == 1 else (2 if self.kind != 's' else (4 if n >= 4 else 2))
        i = 0
        while i + n <= len(self.used):
            if i % align == 0 and not any(self.used[i:i + n]):
                for j in range(i, i + n):
                    self.used[j] = True
                self.high = max(self.high, i + n)
                return Reg(self.kind, i, n)
            i += 1
        raise RuntimeError('out of %s registers (want %d)' % (self.kind, n))

    def free(self, *rs):
        for r in rs:
            for j in range(r.base, r.base + r.n):
                assert self.used[j], 'double free %s' % r
                self.used[j] = False


_REG = re.compile(r'^-?\|?(?:abs\()?([vas])(?:(\d+)|\[(\d+):(\d+)\])\)?\|?$')
TRANS = ('v_exp_f32', 'v_log_f32', 'v_rcp_f32', 'v_rsq_f32', 'v_sqrt_f32', 'v_sin_f32', 'v_cos_f32', 'v_rcp_iflag_f32')
NODST_S = ('s_cmp', 's_cbranch', 's_branch', 's_waitcnt', 's_barrier', 's_nop', 's_setprio', 's_endpgm', 's_sleep',
           's_bitcmp', 's_setreg', 's_sendmsg')


def regs_of(op):
    op = op.strip()
    if op == 'vcc':
        return {('s', 'vcc')}
    if op in ('vcc_lo', 'vcc_hi'):
        return {('s', 'vcc')}
    if op in ('exec', 'exec_lo', 'exec_hi'):
        return {('s', 'exec')}
    if op == 'm0':
        return {('s', 'm0')}
    m = _REG.match(op)
    if not m:
        return set()
    k = m.group(1)
    if m.group(2) is not None:
        return {(k, int(m.group(2)))}
    return {(k, i) for i in range(int(m.group(3)), int(m.group(4)) + 1)}


class Ins:
    def __init__(self, text):
        self.text = text
        t = text.split(';')[0].strip()
        self.label = None
        self.mn = None
        self.rd, self.wr = set(), set()
        self.cls = 'other'
        if not t or t.startswith('.'):
            self.cls = 'dir'
            return
        if t.endswith(':'):
            self.label = t[:-1]
            self.cls = 'label'
            return
        parts = t.split(None, 1)
        mn = parts[0]
        self.mn = mn
        rest = parts[1] if len(parts) > 1 else ''
        ops, cur, depth = [], '', 0
        for ch in rest:
            if ch in '[(':
                depth += 1
            if ch in '])':
                depth -= 1
            if ch == ',' and depth == 0:
                ops.append(cur.strip())
                cur = ''
            else:
                cur += ch
        if cur.strip():
            ops.append(cur.strip())
        mods = ''
        if ops:
            last = ops[-1].split(None, 1)
            if len(last) > 1 and not mn.startswith('s_waitcnt'):
                ops[-1] = last[0]
                mods = last[1]
        self.ops, self.mods = ops, mods
        R = [regs_of(o) for o in ops]
        allr = set().union(*R) if R else set()
        base = re.sub(r'_(e32|e64|dpp|sdwa)$', '', mn)
        self.base = base
        self.dpp = mn.endswith('_dpp') or 'row_' in mods or 'quad_perm' in mods
        self.sdwa = mn.endswith('_sdwa')
        if mn.startswith('v_mfma'):
            self.cls = 'mfma'
            self.wr = R[0]
            self.a, self.b, self.c = R[1], R[2], R[3]
            self.rd = R[1] | R[2] | R[3]
            self.passes = 8 if '32x32' in mn else 4
            assert 'bf16' in mn or 'f16' in mn, mn
        elif mn.startswith('v_'):
            self.cls = 'valu'
            self.trans = base in TRANS
            if base.startswith('v_cmpx'):
                self.wr = R[0] | {('s', 'exec')}
                self.rd = set().union(*R[1:])
            elif base.startswith('v_permlane') and 'swap' in base:
                self.wr = R[0] | R[1]
                self.rd = R[0] | R[1]
            elif re.match(r'v_(add|sub|subrev|addc|subb|subbrev)_co_', base):
                self.wr = R[0] | R[1]
                self.rd = set().union(*R[2:])
            elif base == 'v_nop':
                pass
            else:
                self.wr = R[0]
                self.rd = set().union(*R[1:]) if len(R) > 1 else set()
                if base.startswith(('v_fmac', 'v_dot2c', 'v_pk_fmac', 'v_writelane')) or self.dpp or \
                        (self.sdwa and 'UNUSED_PRESERVE' in mods):
                    self.rd |= R[0]
        elif mn.startswith('ds_'):
            self.cls = 'ds'
            if mn.startswith(('ds_read', 'ds_bpermute', 'ds_permute', 'ds_swizzle')) or '_rtn' in mn:
                self.wr = R[0]
                self.rd = set().union(*R[1:]) if len(R) > 1 else set()
            else:
                self.rd = allr
            if 'addtid' in mn:
                self.rd = self.rd | {('s', 'm0')}
        elif mn.startswith(('buffer_', 'global_')):
            self.cls = 'vmem'
            modl = mods.split()
            self.lds = 'lds' in modl or '_lds_' in mn
            self.wide_store = False
            if mn.startswith(('buffer_wbl2', 'buffer_inv')):
                pass
            elif self.lds:
                self.rd = allr | {('s', 'm0')}
            elif '_load' in mn:
                self.wr = R[0]
                self.rd = set().union(*R[1:])
                if 'd16' in mn:
                    self.rd |= R[0]
            elif '_store' in mn:
                self.rd = allr
                if 'x3' in mn or 'x4' in mn:
                    self.wide_store = True
                    self.sdata = R[0] if mn.startswith('buffer_') else R[1]
            elif '_atomic' in mn:
                self.rd = allr
                if 'sc0' in modl:
                    self.wr = R[0]
                    if mn.startswith('global_'):
                        self.rd = set().union(*R[1:])
            else:
                raise ValueError(text)
        elif mn.startswith(('s_load', 's_buffer_load', 's_memtime', 's_memrealtime')):
            self.cls = 'smem'
            self.wr = R[0]
            self.rd = set().union(*R[1:]) if len(R) > 1 else set()
        elif mn.startswith('s_'):
            self.cls = 'salu'
            if mn.startswith(NODST_S):
                self.rd = allr
                if mn.startswith('s_cbranch_vcc'):
                    self.rd = {('s', 'vcc')}
                if mn.startswith('s_cbranch_exec'):
                    self.rd = {('s', 'exec')}
            else:
                self.wr = R[0]
                self.rd = set().union(*R[1:]) if len(R) > 1 else set()
                if 'saveexec' in mn:
                    self.wr = self.wr | {('s', 'exec')}
                    self.rd = self.rd | {('s', 'exec')}
                if mn.startswith(('s_addk', 's_mulk', 's_cmov', 's_bitset')):
                    self.rd = self.rd | R[0]
        else:
            raise ValueError('unknown instruction: ' + text)
        self.rd, self.wr = set(self.rd), set(self.wr)
        for kind, names in re.findall(r';\s*([WR]):([\w,]+)', text):
            for nm in names.split(','):
                (self.wr if kind == 'W' else self.rd).add(('t', nm))


CAP = 24


class State:
    def __init__(self):
        self.haz = {}
        self.vm = {}
        self.lg = {}

    def copy(self):
        s = State()
        s.haz, s.vm, s.lg = dict(self.haz), dict(self.vm), dict(self.lg)
        return s

    def merge(self, o):
        ch = False
        for a, b in ((self.haz, o.haz), (self.vm, o.vm), (self.lg, o.lg)):
            for k, v in b.items():
                if k not in a or v < a[k]:
                    a[k] = v
                    ch = True
        return ch


def _need(i, st):
    need = 0

    def chk(tag, regs, n):
        nonlocal need
        for r in regs:
            d = st.haz.get((tag, r))
            if d is not None and d < n:
                need = max(need, n - d)

    vec_rd = {r for r in i.rd if r[0] in 'va'}
    vec_wr = {r for r in i.wr if r[0] in 'va'}
    s_rd = {r for r in i.rd if r[0] == 's'}
    if i.cls == 'mfma':
        chk('valu_w', vec_rd, 2)
        chk('dot_w', vec_rd, 3)
        chk('valu_s', {('s', 'exec')}, 4)
        for p, ab, ov in ((4, 8, 6), (8, 12, 10)):
            chk('mfma%d_w' % p, i.a | i.b, ab)
            for r in i.c:
                d = st.haz.get(('mfma%d_w' % p, r))
                if d is None:
                    continue
                same = st.haz.get(('mfmaD', i.mn, min(i.c), len(i.c)))
                if p == i.passes and same is not None and same == d:
                    continue
                if d < ov:
                    need = max(need, ov - d)
            for r in i.wr - i.c:
                d = st.haz.get(('mfma%d_w' % p, r))
                if d is not None and d < ov:
                    need = max(need, ov - d)
    elif i.cls in ('valu', 'ds', 'vmem'):
        for p, n, war in ((4, 8, 3), (8, 12, 7)):
            chk('mfma%d_w' % p, vec_rd | vec_wr, n)
            if i.cls == 'valu':
                chk('mfma%d_c' % p, vec_wr, war)
            else:
                chk('mfma%d_c' % p, vec_wr, war)
        if i.cls == 'valu':
            if not i.trans:
                chk('trans_w', vec_rd, 1)
            chk('opsel_w', vec_rd | vec_wr, 1)
            if i.base.startswith('v_dot2'):
                chk('dot_w', regs_of(i.ops[1]) | regs_of(i.ops[2]), 3)
            else:
                chk('dot_w', vec_rd | vec_wr, 3)
            if i.dpp:
                chk('valu_w', vec_rd, 2)
                chk('valu_s', {('s', 'exec')}, 5)
            if i.base.startswith('v_permlane'):
                chk('valu_w', vec_rd, 2)
                chk('valu_s', {('s', 'exec')}, 4)
            if i.base.startswith(('v_readlane', 'v_readfirstlane', 'v_writelane')):
                chk('valu_w', vec_rd, 1)
                chk('valu_s', s_rd | {('s', 'exec')}, 4)
            chk('valu_s', s_rd, 2)
            if i.base.startswith('v_div_fmas'):
                chk('valu_s', {('s', 'vcc')}, 4)
            chk('st_data', vec_wr, 2)
        else:
            chk('dot_w', vec_rd | vec_wr, 3)
            chk('st_data', vec_wr, 1)
            if i.cls == 'vmem':
                chk('valu_s', s_rd, 5)
            if ('s', 'm0') in i.rd:
                chk('salu_m0', {('s', 'm0')}, 1)
    elif i.cls in ('salu', 'smem'):
        chk('valu_s', s_rd, 4 if not i.mn.startswith('s_cbranch') else 5)
    return need


def _advance(st, n):
    for k in list(st.haz):
        v = st.haz[k] + n
        if v >= CAP:
            del st.haz[k]
        else:
            st.haz[k] = v


def _wait(st, vm, lg):
    if vm is not None:
        st.vm = {k: v for k, v in st.vm.items() if v < vm}
    if lg is not None:
        st.lg = {k: v for k, v in st.lg.items() if v < lg}


def _step(ins, idx, st, out):
    i = ins[idx]
    if i.cls in ('dir', 'label'):
        out.append(i.text)
        return
    if i.mn == 's_waitcnt':
        m = re.search(r'vmcnt\((\d+)\)', i.text)
        l = re.search(r'lgkmcnt\((\d+)\)', i.text)
        _wait(st, int(m.group(1)) if m else None, int(l.group(1)) if l else None)
        out.append(i.text)
        _advance(st, 1)
        return
    if i.mn == 's_nop':
        out.append(i.text)
        _advance(st, int(i.ops[0], 0) + 1)
        return
    touch = i.rd | {r for r in i.wr if r[0] != 't'}
    vm = lg = None
    for k, v in st.vm.items():
        if ins[k].wr & touch:
            vm = v if vm is None else min(vm, v)
    smem_pending = any(ins[k].cls == 'smem' for k in st.lg)
    for k, v in st.lg.items():
        if ins[k].wr & touch:
            vv = 0 if smem_pending else v
            lg = vv if lg is None else min(lg, vv)
    if vm is not None or lg is not None:
        w = 's_waitcnt'
        if vm is not None:
            vm = min(vm, 63)
            w += ' vmcnt(%d)' % vm
        if lg is not None:
            lg = min(lg, 15)
            w += ' lgkmcnt(%d)' % lg
        out.append('    ' + w)
        _wait(st, vm, lg)
        _advance(st, 1)
    n = _need(i, st)
    while n > 0:
        k = min(n, 16)
        out.append('    s_nop %d' % (k - 1))
        _advance(st, k)
        n -= k
    out.append(i.text)
    _advance(st, 1)
    if i.cls == 'vmem':
        for k in st.vm:
            st.vm[k] = min(st.vm[k] + 1, 64)
        st.vm[idx] = 0
        if i.wide_store:
            for r in i.sdata:
                st.haz[('st_data', r)] = 0
    elif i.cls in ('ds', 'smem'):
        inc = 1
        for k in st.lg:
            st.lg[k] = min(st.lg[k] + inc, 16)
        st.lg[idx] = 0
    for r in i.wr:
        for tag in ('valu_w', 'trans_w', 'opsel_w', 'valu_s', 'dot_w'):
            st.haz.pop((tag, r), None)
    if i.cls == 'valu':
        for r in i.wr:
            if r[0] == 's':
                st.haz[('valu_s', r)] = 0
            else:
                st.haz[('valu_w', r)] = 0
                if i.trans:
                    st.haz[('trans_w', r)] = 0
                if i.base.startswith('v_dot2'):
                    st.haz[('dot_w', r)] = 0
                if i.sdwa or ('op_sel' in i.mods and not i.base.startswith('v_pk')):
                    st.haz[('opsel_w', r)] = 0
    elif i.cls == 'mfma':
        for r in i.wr:
            for p in (4, 8):
                st.haz.pop(('mfma%d_w' % p, r), None)
            st.haz[('mfma%d_w' % i.passes, r)] = 0
        st.haz[('mfmaD', i.mn, min(i.wr), len(i.wr))] = 0
        for r in i.c:
            st.haz[('mfma%d_c' % i.passes, r)] = 0
    elif i.cls == 'salu':
        if ('s', 'm0') in i.wr:
            st.haz[('salu_m0', ('s', 'm0'))] = 0


def finalize(lines):
    ins = [Ins(l) for l in lines]
    starts = {0}
    for k, i in enumerate(ins):
        if i.cls == 'label':
            starts.add(k)
        if i.mn and i.mn.startswith(('s_cbranch', 's_branch', 's_endpgm')):
            starts.add(k + 1)
    starts = sorted(s for s in starts if s < len(ins))
    blocks = [(s, e) for s, e in zip(starts, starts[1:] + [len(ins)])]
    lab = {ins[s].label: b for b, (s, e) in enumerate(blocks) if ins[s].cls == 'label'}
    succ = []
    for b, (s, e) in enumerate(blocks):
        last = None
        for k in range(e - 1, s - 1, -1):
            if ins[k].mn:
                last = ins[k]
                break
        nx = []
        if last is not None and last.mn.startswith(('s_cbranch', 's_branch')):
            nx.append(lab[last.ops[0]])
        if not (last is not None and last.mn in ('s_branch', 's_endpgm')) and b + 1 < len(blocks):
            nx.append(b + 1)
        succ.append(nx)
    inst = [None] * len(blocks)
    inst[0] = State()
    outs = [None] * len(blocks)
    work = [0]
    while work:
        b = min(work)
        work.remove(b)
        st = inst[b].copy()
        out = []
        for k in range(*blocks[b]):
            _step(ins, k, st, out)
        outs[b] = out
        for n in succ[b]:
            if inst[n] is None:
                inst[n] = st.copy()
                if n not in work:
                    work.append(n)
            elif inst[n].merge(st) and n not in work:
                work.append(n)
    res = []
    for b, o in enumerate(outs):
        if o is None:
            o = [ins[k].text for k in range(*blocks[b])]
        res += o
    return res


class Kernel:
    def __init__(self, name, grid, block, lds=0, nv=256, na=0):
        self.name, self.grid, self.block, self.lds = name, grid, block, lds
        self.lines = []
        self.V = Pool('v', 1, nv)
        self.A = Pool('a', 0, na) if na else None
        self.S = Pool('s', 3, 102)
        self._lab = 0

    def __call__(self, fmt, *a):
        self.lines.append('    ' + (fmt % a if a else fmt))

    def v(self, n=1, align=None):
        return self.V.alloc(n, align)

    def a(self, n=1, align=None):
        return self.A.alloc(n, align)

    def s(self, n=1, align=None):
        return self.S.alloc(n, align)

    def free(self, *rs):
        for r in rs:
            {'v': self.V, 'a': self.A, 's': self.S}[r.kind].free(r)

    def label(self, hint='L'):
        self._lab += 1
        return '%s_%s%d' % (self.name.replace('_kernel', ''), hint, self._lab)

    def place(self, l):
        self.lines.append(l + ':')

    def comment(self, c):
        self.lines.append('    ; ' + c)

    def srd(self, base_pair, nbytes, add=0):
        r = self.s(4, 4)
        if add:
            self('s_add_u32 %s, %s, 0x%x', r[0], base_pair[0], add)
            self('s_addc_u32 %s, %s, 0', r[1], base_pair[1])
        else:
            self('s_mov_b32 %s, %s', r[0], base_pair[0])
            self('s_mov_b32 %s, %s', r[1], base_pair[1])
        self('s_mov_b32 %s, 0x%x', r[2], nbytes)
        self('s_mov_b32 %s, 0x20000', r[3])
        return r

    def text(self):
        body = finalize(self.lines)
        out = ['.text', '.globl %s' % self.name, '.p2align 8', '.type %s,@function' % self.name, self.name + ':']
        out += body
        return out

    def descriptor(self):
        nv = self.V.high
        acc = (nv + 3) // 4 * 4
        tot = acc + self.A.high if self.A and self.A.high else nv
        return ['.p2align 6', '.amdhsa_kernel %s' % self.name,
                '  .amdhsa_next_free_vgpr %d' % tot,
                '  .amdhsa_next_free_sgpr %d' % max(self.S.high, 16),
                '  .amdhsa_accum_offset %d' % acc,
                '  .amdhsa_group_segment_fixed_size 0',
                '  .amdhsa_kernarg_size 88',
                '  .amdhsa_user_sgpr_count 2',
                '  .amdhsa_user_sgpr_kernarg_segment_ptr 1',
                '  .amdhsa_system_sgpr_workgroup_id_x 1',
                '  .amdhsa_float_denorm_mode_32 3',
                '.end_amdhsa_kernel']


def assemble(kernels, header, launches=None):
    out = list(header)
    for k in (launches or kernels):
        out.append('; @launch kernel=%s grid=(%d,1,1) block=(%d,1,1) lds=%d' % (k.name, k.grid, k.block, k.lds))
    out.append('.amdgcn_target "amdgcn-amd-amdhsa--gfx950"')
    for k in kernels:
        out += k.text()
    out.append('.section .rodata,"a"')
    for k in kernels:
        out += k.descriptor()
    return '\n'.join(out) + '\n'
```

```python
import sys
from asmlib import *

S, D, F = 2048, 448, 1792
MOD = 0
T1 = 0x2000
T2 = 0x1C4000
T2X = 0x384000
X1 = 0x386000
H2F = 0x546000
HF = 0x706000
W1F = 0xE06000
W2F = 0xF8E000
WSEND = 0x1116000
OOB = 0x80000000
A_X, A_WR, A_WI, A_W1, A_W2, A_C, A_WM, A_OUT, A_DBG, A_WS = 0, 8, 16, 32, 40, 48, 56, 64, 72, 80
LOG2E = 1.4426950408889634


def ptr(k, off):
    p = k.s(2)
    k('s_load_dwordx2 %s, s[0:1], %d', p, off)
    return p


def begin(k):
    end = k.label('end')
    k('s_cmp_ge_u32 s2, %d', k.grid)
    k('s_cbranch_scc1 %s', end)
    return end


def finish(k, end):
    k.place(end)
    k('s_endpgm')


def wave_id(k):
    t = k.v()
    w = k.s()
    k('v_lshrrev_b32 %s, 6, v0', t)
    k('v_readfirstlane_b32 %s, %s', w, t)
    k.free(t)
    return w


def lo(k, d, s):
    k('v_lshlrev_b32 %s, 16, %s', d, s)


def hi(k, d, s):
    k('v_and_b32 %s, 0xffff0000, %s', d, s)


def unpack4(k, dst, src, rev):
    order = dst[::-1] if rev else dst
    lo(k, order[0], src[0])
    hi(k, order[1], src[0])
    lo(k, order[2], src[1])
    hi(k, order[3], src[1])


def pk(k, d, a, b):
    k('v_cvt_pk_bf16_f32 %s, %s, %s', d, a, b)


def swap_add(k, x, t, which):
    k('v_mov_b32 %s, %s', t, x)
    k('v_permlane%d_swap_b32 %s, %s', which, x, t)
    k('v_add_f32 %s, %s, %s', x, x, t)


def k0():
    k = Kernel('k0_kernel', 196, 256, lds=512, nv=128)
    end = begin(k)
    pws = ptr(k, A_WS)
    shuf = k.label('shuf')
    k('s_cmp_ge_u32 s2, 84')
    k('s_cbranch_scc1 %s', shuf)
    pc, pm = ptr(k, A_C), ptr(k, A_WM)
    ws = k.srd(pws, WSEND)
    rc = k.srd(pc, 896)
    rm = k.srd(pm, 448 * 5376)
    rg, cg, off, t = k.v(), k.v(), k.v(), k.v()
    k('v_lshrrev_b32 %s, 2, v0', rg)
    k('v_and_b32 %s, 3, v0', cg)
    k('v_mul_u32_u24 %s, 5376, %s', off, rg)
    k('v_lshl_add_u32 %s, %s, 4, %s', off, cg, off)
    k('v_lshlrev_b32 %s, 1, %s', rg, rg)
    so = k.s()
    cv = k.v(7)
    wv = k.v(28, 4)
    for i in range(7):
        k('buffer_load_ushort %s, %s, %s, 0 offen offset:%d', cv[i], rg, rc, i * 128)
    k('s_lshl_b32 %s, s2, 6', so)
    for i in range(7):
        k('buffer_load_dwordx4 %s, %s, %s, %s offen', wv[4 * i:4 * i + 4], off, rm, so)
        if i < 6:
            k('s_add_u32 %s, %s, %d', so, so, 64 * 5376)
    e = k.v(7)
    for i in range(7):
        lo(k, cv[i], cv[i])
        k('v_mul_f32 %s, %s, %s', e[i], fl(-LOG2E), cv[i])
        k('v_exp_f32 %s, %s', e[i], e[i])
    for i in range(7):
        k('v_add_f32 %s, 1.0, %s', e[i], e[i])
        k('v_rcp_f32 %s, %s', e[i], e[i])
    for i in range(7):
        k('v_mul_f32 %s, %s, %s', cv[i], cv[i], e[i])
        pk(k, cv[i], cv[i], cv[i])
        lo(k, cv[i], cv[i])
    acc = k.v(8)
    for i in range(7):
        for j in range(8):
            (lo if j % 2 == 0 else hi)(k, t, wv[4 * i + j // 2])
            if i == 0:
                k('v_mul_f32 %s, %s, %s', acc[j], t, cv[i])
            else:
                k('v_fmac_f32 %s, %s, %s', acc[j], t, cv[i])
    for r in (4, 8):
        for j in range(8):
            k('v_add_f32_dpp %s, %s, %s row_ror:%d row_mask:0xf bank_mask:0xf', acc[j], acc[j], acc[j], r)
    tt = k.v(8)
    for wch in (16, 32):
        for j in range(8):
            k('v_mov_b32 %s, %s', tt[j], acc[j])
        for j in range(8):
            k('v_permlane%d_swap_b32 %s, %s', wch, acc[j], tt[j])
        for j in range(8):
            k('v_add_f32 %s, %s, %s', acc[j], acc[j], tt[j])
    k('v_lshrrev_b32 %s, 6, v0', t)
    k('v_lshlrev_b32 %s, 7, %s', t, t)
    k('v_lshl_add_u32 %s, %s, 5, %s', t, cg, t)
    a4 = k.v(8, 4)
    for j in range(8):
        k('v_mov_b32 %s, %s', a4[j], acc[j])
    k('ds_write_b128 %s, %s ;W:m', t, a4[0:4])
    k('ds_write_b128 %s, %s offset:16 ;W:m', t, a4[4:8])
    k('s_barrier ;R:m')
    k('v_and_b32 %s, 31, v0', t)
    k('v_lshlrev_b32 %s, 2, %s', off, t)
    for j in range(4):
        k('ds_read_b32 %s, %s offset:%d', acc[j], off, j * 128)
    k('v_add_f32 %s, %s, %s', acc[0], acc[0], acc[1])
    k('v_add_f32 %s, %s, %s', acc[2], acc[2], acc[3])
    k('v_add_f32 %s, %s, %s', acc[0], acc[0], acc[2])
    pk(k, acc[0], acc[0], acc[0])
    one = k.s()
    sec = k.s()
    k('s_mul_i32 %s, s2, 4682', sec)
    k('s_lshr_b32 %s, %s, 16', sec, sec)
    k('s_mov_b32 %s, 0', one)
    k('s_cmp_eq_u32 %s, 1', sec)
    k('s_cselect_b32 %s, 1.0, %s', one, one)
    k('s_cmp_eq_u32 %s, 4', sec)
    k('s_cselect_b32 %s, 1.0, %s', one, one)
    lo(k, acc[0], acc[0])
    k('v_add_f32 %s, %s, %s', acc[0], one, acc[0])
    pk(k, acc[0], acc[0], acc[0])
    k('v_lshlrev_b32 %s, 1, v0', off)
    k('v_cmp_gt_u32 vcc, 32, v0')
    k('v_mov_b32 %s, 0x%x', t, OOB)
    k('v_cndmask_b32 %s, %s, %s, vcc', off, t, off)
    k('s_lshl_b32 %s, s2, 6', so)
    k('buffer_store_short %s, %s, %s, %s offen offset:%d', acc[0], off, ws, so, MOD)
    k('s_endpgm')
    k.free(rg, cg, off, t, cv, wv, e, acc, tt, a4, so, one, sec, ws, rc, rm, pc, pm)
    k.place(shuf)
    p1, p2 = ptr(k, A_W1), ptr(k, A_W2)
    w = wave_id(k)
    ws = k.srd(pws, WSEND)
    W, b1, b2, st, rs, cb, ob, ts, q, tmp = [k.s() for _ in range(10)]
    src = k.s(4, 4)
    l2, go = k.label('w2'), k.label('go')
    k('s_sub_u32 %s, s2, 84', W)
    k('s_lshl_b32 %s, %s, 2', W, W)
    k('s_add_u32 %s, %s, %s', W, W, w)
    k('s_mov_b32 %s, %d', src[2], 448 * 1792 * 2)
    k('s_mov_b32 %s, 0x20000', src[3])
    k('s_cmp_ge_u32 %s, 224', W)
    k('s_cbranch_scc1 %s', l2)
    k('s_mov_b32 %s, %s', src[0], p1[0])
    k('s_mov_b32 %s, %s', src[1], p1[1])
    k('s_lshr_b32 %s, %s, 2', q, W)
    k('s_lshr_b32 %s, %s, 3', b1, q)
    k('s_lshl_b32 %s, %s, 4', b1, b1)
    k('s_and_b32 %s, %s, 3', tmp, q)
    k('s_lshl_b32 %s, %s, 2', tmp, tmp)
    k('s_add_u32 %s, %s, %s', b1, b1, tmp)
    k('s_add_u32 %s, %s, 224', b2, b1)
    k('s_sub_u32 %s, 447, %s', tmp, b1)
    k('s_sub_u32 %s, 223, %s', cb, b1)
    k('s_bitcmp1_b32 %s, 2', q)
    k('s_cselect_b32 %s, %s, %s', b1, tmp, b1)
    k('s_cselect_b32 %s, %s, %s', b2, cb, b2)
    k('s_cselect_b32 %s, -1, 1', st)
    k('s_mov_b32 %s, 3584', rs)
    k('s_and_b32 %s, %s, 3', tmp, W)
    k('s_mul_i32 %s, %s, 896', cb, tmp)
    k('s_mul_i32 %s, %s, %d', ob, tmp, 14 * 28 * 1024)
    k('s_lshl_b32 %s, %s, 9', tmp, q)
    k('s_add_u32 %s, %s, %s', ob, ob, tmp)
    k('s_add_u32 %s, %s, 0x%x', ob, ob, W1F)
    k('s_mov_b32 %s, %d', ts, 28 * 1024)
    k('s_branch %s', go)
    k.place(l2)
    k('s_mov_b32 %s, %s', src[0], p2[0])
    k('s_mov_b32 %s, %s', src[1], p2[1])
    k('s_sub_u32 %s, %s, 224', W, W)
    k('s_lshr_b32 %s, %s, 1', b1, W)
    k('s_lshl_b32 %s, %s, 4', b1, b1)
    k('s_and_b32 %s, %s, 1', tmp, W)
    k('s_lshl_b32 %s, %s, 2', tmp, tmp)
    k('s_add_u32 %s, %s, %s', b1, b1, tmp)
    k('s_add_u32 %s, %s, 8', b2, b1)
    k('s_mov_b32 %s, 1', st)
    k('s_mov_b32 %s, 896', rs)
    k('s_mov_b32 %s, 0', cb)
    k('s_lshl_b32 %s, %s, 9', ob, W)
    k('s_add_u32 %s, %s, 0x%x', ob, ob, W2F)
    k('s_mov_b32 %s, %d', ts, 112 * 1024)
    k.place(go)
    l, vi, vo, t = k.v(), k.v(), k.v(), k.v()
    k('v_and_b32 %s, 63, v0', l)
    k('v_lshlrev_b32 %s, 4, %s', vi, l)
    k('v_lshrrev_b32 %s, 2, %s', vo, l)
    k('v_mul_lo_u32 %s, %s, %s', vo, vo, ts)
    k('v_and_b32 %s, 3, %s', t, l)
    k('v_lshl_add_u32 %s, %s, 7, %s', vo, t, vo)
    k('v_mov_b32 %s, 0x%x', t, OOB)
    k('v_cmp_gt_u32 vcc, 56, %s', l)
    k('v_cndmask_b32 %s, %s, %s, vcc', vi, t, vi)
    k('v_cndmask_b32 %s, %s, %s, vcc', vo, t, vo)
    k('s_mul_i32 %s, %s, %s', b1, b1, rs)
    k('s_mul_i32 %s, %s, %s', b2, b2, rs)
    k('s_mul_i32 %s, %s, %s', st, st, rs)
    k('s_add_u32 %s, %s, %s', b1, b1, cb)
    k('s_add_u32 %s, %s, %s', b2, b2, cb)
    L = k.v(32, 4)
    for i in range(8):
        b = b1 if i < 4 else b2
        k('buffer_load_dwordx4 %s, %s, %s, %s offen', L[4 * i:4 * i + 4], vi, src, b)
        if i % 4 != 3:
            k('s_add_u32 %s, %s, %s', b, b, st)
    sl, sh = k.s(), k.s()
    k('s_mov_b32 %s, 0x05040100', sl)
    k('s_mov_b32 %s, 0x07060302', sh)
    O = k.v(32, 4)
    for j in range(8):
        for t2 in range(4):
            k('v_perm_b32 %s, %s, %s, %s', O[4 * j + t2], L[4 * (2 * t2 + 1) + j // 2], L[4 * (2 * t2) + j // 2],
              sh if j & 1 else sl)
        k('buffer_store_dwordx4 %s, %s, %s, %s offen offset:%d', O[4 * j:4 * j + 4], vo, ws, ob, 16 * j)
    finish(k, end)
    return k


def twiddle(k, idx16, slot_int, s2, inverse):
    raise NotImplementedError


def k1():
    k = Kernel('k1_kernel', 256, 512, lds=8192, nv=128)
    end = begin(k)
    px, pws = ptr(k, A_X), ptr(k, A_WS)
    w = wave_id(k)
    s2, par = k.s(), k.s()
    k('s_and_b32 %s, s2, 127', s2)
    k('s_lshr_b32 %s, s2, 7', par)
    l, c, row, t, t2 = [k.v() for _ in range(5)]
    k('v_and_b32 %s, 63, v0', l)
    k('v_and_b32 %s, 31, v0', c)
    k('v_lshrrev_b32 %s, 5, v0', row)
    rx = k.srd(px, S * D * 2)
    ws = k.srd(pws, WSEND)
    vA, vB, mA, mB = [k.v() for _ in range(4)]
    k('v_lshlrev_b32 %s, 3, %s', mA, c)
    k('v_sub_u32 %s, 440, %s', mB, mA)
    k('v_mov_b32 %s, 0x%x', t2, OOB)
    k('v_cmp_gt_u32 vcc, 28, %s', c)
    k('v_mul_u32_u24 %s, %d, %s', t, 128 * 896, row)
    k('v_cndmask_b32 %s, %s, %s, vcc', mA, t2, mA)
    k('v_cndmask_b32 %s, %s, %s, vcc', mB, t2, mB)
    k('v_add_u32 %s, %s, %s', vA, t, mA)
    k('v_add_u32 %s, %s, %s', vB, t, mB)
    so = k.s()
    k('s_mul_i32 %s, %s, 896', so, s2)
    X = k.v(8, 2)
    for qd, (va, o) in enumerate(((vA, 0), (vA, 448), (vB, 0), (vB, 448))):
        k('buffer_load_dwordx2 %s, %s, %s, %s offen offset:%d', X[2 * qd:2 * qd + 2], va, rx, so, o)
    M = k.v(16, 2)
    for sec in range(2):
        for qd, (va, o) in enumerate(((mA, 0), (mA, 448), (mB, 0), (mB, 448))):
            k('buffer_load_dwordx2 %s, %s, %s, 0 offen offset:%d', M[8 * sec + 2 * qd:8 * sec + 2 * qd + 2], va, ws,
              MOD + sec * 896 + o)
    k.free(vA, vB, mA, mB)
    n, g = k.v(), k.v()
    k('v_and_b32 %s, 15, v0', n)
    k('v_bfe_u32 %s, v0, 4, 2', g)
    CC, CS = k.v(14, 2), k.v(14, 2)
    G = k.v(6, 2)
    skipc = k.label('skipc')
    k('s_cmp_eq_u32 %s, 7', w)
    k('s_cbranch_scc1 %s', skipc)
    k('s_lshl_b32 %s, %s, 5', so, w)
    k('s_add_u32 %s, %s, %s', so, so, par)
    xc, xs, gf, b1c, b1s = [k.v() for _ in range(5)]
    k('v_lshl_add_u32 %s, %s, 1, %s', t, n, so)
    k('v_cmp_eq_u32 vcc, 0, %s', t)
    k('v_mov_b32 %s, 224', t2)
    k('v_cvt_f32_u32 %s, %s', xc, t)
    k('v_cndmask_b32 %s, %s, %s, vcc', t2, t, t2)
    k('v_cvt_f32_u32 %s, %s', xs, t2)
    k('v_mul_f32 %s, %s, %s', xc, fl(1 / 896), xc)
    k('v_mul_f32 %s, %s, %s', xs, fl(-1 / 896), xs)
    k('v_cvt_f32_u32 %s, %s', gf, g)
    an = k.v(8)
    for tstep in range(4):
        if tstep in (0, 3):
            k('v_fma_f32 %s, %s, %s, 1.0', t, gf, '4.0')
            k('v_fma_f32 %s, %s, %s, %s', t, gf, '4.0', t)
            if tstep == 0:
                k('v_fma_f32 %s, %s, %s, %s', t, gf, '4.0', t)
                k('v_fma_f32 %s, %s, %s, %s', t, gf, '4.0', t)
            k('v_mul_f32 %s, %s, %s', b1c, xc, t)
            k('v_mul_f32 %s, %s, %s', b1s, xs, t)
        ni = 8 if tstep < 3 else 4
        for xx, bb, fn, dst in ((xc, b1c, 'cos', CC), (xs, b1s, 'sin', CS)):
            for i in range(ni):
                kk = 64 * tstep + 2 * i
                if kk == 0:
                    k('v_%s_f32 %s, %s', fn, an[i], bb)
                else:
                    k('v_fmamk_f32 %s, %s, %s, %s', an[i], xx, fl(kk), bb)
                    k('v_%s_f32 %s, %s', fn, an[i], an[i])
            for i in range(ni // 2):
                pk(k, dst[4 * tstep + i], an[2 * i], an[2 * i + 1])
    k('v_cvt_f32_u32 %s, %s', xc, n)
    k('v_mul_f32 %s, %s, %s', xc, fl(1 / 2048), xc)
    k('v_lshl_add_u32 %s, %s, 9, %s', t, g, s2)
    k('v_cvt_f32_u32 %s, %s', t, t)
    k('v_mul_f32 %s, %s, %s', b1c, xc, t)
    for i in range(4):
        if i:
            k('v_fmamk_f32 %s, %s, %s, %s', t, xc, fl(128 * i), b1c)
        k('v_cos_f32 %s, %s', an[i], t if i else b1c)
        k('v_sin_f32 %s, %s', an[4 + i], t if i else b1c)
    pk(k, G[2], an[0], an[1])
    pk(k, G[3], an[2], an[3])
    pk(k, G[4], an[4], an[5])
    pk(k, G[5], an[6], an[7])
    pk(k, G[0], '-%s' % an[4], '-%s' % an[5])
    pk(k, G[1], '-%s' % an[6], '-%s' % an[7])
    k.free(xc, xs, gf, b1c, b1s, an)
    k.place(skipc)
    wa = k.v()
    k('v_lshrrev_b32 %s, 1, %s', t, c)
    k('v_and_b32 %s, 7, %s', t2, t)
    k('v_xor_b32 %s, %s, %s', t2, t2, row)
    k('v_lshlrev_b32 %s, 4, %s', t2, t2)
    k('v_lshl_add_u32 %s, %s, 8, %s', wa, t, t2)
    k('v_and_b32 %s, 1, %s', t, c)
    k('v_lshl_add_u32 %s, %s, 3, %s', wa, t, wa)
    k('v_lshlrev_b32 %s, 7, %s', t, c)
    k('v_lshl_add_u32 %s, %s, 3, %s', t, row, t)
    k('v_cmp_gt_u32 vcc, 24, %s', c)
    k('v_cndmask_b32 %s, %s, %s, vcc', wa, t, wa)
    sm, sq = k.v(), k.v()
    ones = k.s()
    k('s_mov_b32 %s, 0x3f803f80', ones)
    for i in range(8):
        k('v_dot2_f32_bf16 %s, %s, %s, %s', sm, X[i], ones, sm if i else 0)
        k('v_dot2_f32_bf16 %s, %s, %s, %s', sq, X[i], X[i], sq if i else 0)
    for r in (8, 4, 2, 1):
        for x in (sm, sq):
            k('v_add_f32_dpp %s, %s, %s row_ror:%d row_mask:0xf bank_mask:0xf', x, x, x, r)
    swap_add(k, sm, t, 16)
    swap_add(k, sq, t2, 16)
    k('v_mul_f32 %s, %s, %s', sm, fl(1 / D), sm)
    k('v_mul_f32 %s, %s, %s', t, sm, sm)
    k('v_fma_f32 %s, %s, %s, -%s', sq, sq, ones_d(k), t)
    k('v_max_f32 %s, 0, %s', sq, sq)
    k('v_add_f32 %s, %s, %s', sq, fl(1e-5), sq)
    k('v_rsq_f32 %s, %s', sq, sq)
    k('v_mul_f32 %s, -%s, %s', sm, sm, sq)
    H = [[k.v() for _ in range(4)] for _ in range(4)]
    ca, sa = [k.v() for _ in range(4)], [k.v() for _ in range(4)]
    for qd in range(4):
        rev = qd >= 2
        unpack4(k, H[qd], X[2 * qd:2 * qd + 2], rev)
        unpack4(k, sa, M[2 * qd:2 * qd + 2], rev)
        unpack4(k, ca, M[8 + 2 * qd:8 + 2 * qd + 2], rev)
        for i in range(4):
            k('v_fma_f32 %s, %s, %s, %s', H[qd][i], H[qd][i], sq, sm)
        for i in range(4):
            k('v_fma_f32 %s, %s, %s, %s', H[qd][i], H[qd][i], ca[i], sa[i])
    sg = k.s()
    k('s_cmp_eq_u32 %s, 0', par)
    k('s_cselect_b32 %s, 1.0, -1.0', sg)
    p_, r_, t_, q_ = H
    for i in range(4):
        k('v_add_f32 %s, %s, %s', ca[i], r_[i], t_[i])
        k('v_sub_f32 %s, %s, %s', sa[i], r_[i], t_[i])
        k('v_add_f32 %s, %s, %s', r_[i], q_[i], p_[i])
        k('v_sub_f32 %s, %s, %s', t_[i], q_[i], p_[i])
        k('v_fma_f32 %s, %s, %s, %s', ca[i], r_[i], sg, ca[i])
        k('v_fma_f32 %s, -%s, %s, %s', sa[i], t_[i], sg, sa[i])
    pk(k, X[0], ca[0], ca[1])
    pk(k, X[1], ca[2], ca[3])
    pk(k, X[2], sa[0], sa[1])
    pk(k, X[3], sa[2], sa[3])
    k('ds_write_b64 %s, %s ;W:a', wa, X[0:2])
    k('ds_write_b64 %s, %s offset:4096 ;W:a', wa, X[2:4])
    for hh in H:
        k.free(*hh)
    k.free(*ca)
    k.free(*sa)
    k.free(X, M, sm, sq, wa)
    ra, rb_, rt = k.v(), k.v(), k.v()
    k('v_xor_b32 %s, %s, %s', t, n, g)
    k('v_lshlrev_b32 %s, 4, %s', t, t)
    k('v_lshl_add_u32 %s, %s, 8, %s', ra, g, t)
    k('v_xor_b32 %s, 64, %s', rb_, ra)
    k('v_lshlrev_b32 %s, 3, %s', rt, l)
    k('s_barrier ;R:a')
    k('s_cmp_eq_u32 %s, 7', w)
    k('s_cbranch_scc1 %s', end)
    A = k.v(28, 2)
    for comp in range(2):
        for ts in range(3):
            k('ds_read_b128 %s, %s offset:%d', A[14 * comp + 4 * ts:14 * comp + 4 * ts + 4], rb_ if ts & 1 else ra,
              comp * 4096 + ts * 1024)
        k('ds_read_b64 %s, %s offset:%d', A[14 * comp + 12:14 * comp + 14], rt, comp * 4096 + 3072)
    Ar, Ai = k.v(4, 2), k.v(4, 2)
    for comp, (acc, C) in enumerate(((Ar, CC), (Ai, CS))):
        for ts in range(3):
            k('v_mfma_f32_16x16x32_bf16 %s, %s, %s, %s', acc, A[14 * comp + 4 * ts:14 * comp + 4 * ts + 4],
              C[4 * ts:4 * ts + 4], acc if ts else 0)
        k('v_mfma_f32_16x16x16_bf16 %s, %s, %s, %s', acc, A[14 * comp + 12:14 * comp + 14], C[12:14], acc)
    vo = k.v()
    k('v_lshlrev_b32 %s, 13, %s', vo, n)
    k('v_lshl_add_u32 %s, %s, 3, %s', vo, g, vo)
    o0, o1, ox = k.s(), k.s(), k.s()
    k('s_lshl_b32 %s, %s, 6', o0, s2)
    k('s_and_b32 %s, %s, 4', o1, s2)
    k('s_lshl_b32 %s, %s, 3', o1, o1)
    k('s_add_u32 %s, %s, %s', o0, o0, o1)
    k('s_add_u32 %s, %s, 0x%x', ox, o0, T1 + 224 * 8192)
    k('s_mul_i32 %s, %s, 7', o1, par)
    k('s_add_u32 %s, %s, %s', o1, o1, w)
    k('s_lshl_b32 %s, %s, 17', so, o1)
    k('s_add_u32 %s, %s, %s', o0, o0, so)
    k('s_add_u32 %s, %s, 0x%x', o0, o0, T1)
    Fm = k.v(4, 2)
    pk(k, Fm[0], Ar[0], Ar[1])
    pk(k, Fm[1], Ar[2], Ar[3])
    pk(k, Fm[2], Ai[0], Ai[1])
    pk(k, Fm[3], Ai[2], Ai[3])
    Ur, Ui = k.v(4, 2), k.v(4, 2)
    reg = k.label('reg')
    k('s_cmp_lg_u32 %s, 0', o1)
    k('s_cbranch_scc1 %s', reg)
    Fx = k.v(4, 2)
    k('v_mov_b32 %s, 0', Fx[0])
    k('v_mov_b32 %s, 0', Fx[1])
    k('v_mov_b32 %s, %s', Fx[2], Fm[2])
    k('v_mov_b32 %s, %s', Fx[3], Fm[3])
    k('v_cmp_eq_u32 vcc, 0, %s', n)
    k('v_mfma_f32_16x16x32_bf16 %s, %s, %s, 0', Ur, Fx, G[2:6])
    k('v_mfma_f32_16x16x32_bf16 %s, %s, %s, 0', Ui, Fx, G[0:4])
    k('v_cndmask_b32 %s, %s, %s, vcc', Fm[2], Fm[2], Fx[0])
    k('v_cndmask_b32 %s, %s, %s, vcc', Fm[3], Fm[3], Fx[0])
    k('v_cmp_gt_u32 vcc, 16, %s', l)
    k('v_lshlrev_b32 %s, 1, %s', t, l)
    k('v_mov_b32 %s, 0x%x', t2, OOB)
    k('v_cndmask_b32 %s, %s, %s, vcc', t, t2, t)
    pk(k, Fx[2], Ur[0], Ui[0])
    k('buffer_store_short %s, %s, %s, %s offen', Fx[2], t, ws, ox)
    k('s_xor_b32 %s, %s, 32', ox, ox)
    k('buffer_store_short_d16_hi %s, %s, %s, %s offen', Fx[2], t, ws, ox)
    k.place(reg)
    k('v_mfma_f32_16x16x32_bf16 %s, %s, %s, 0', Ur, Fm, G[2:6])
    k('v_mfma_f32_16x16x32_bf16 %s, %s, %s, 0', Ui, Fm, G[0:4])
    k('s_xor_b32 %s, %s, 32', o1, o0)
    pk(k, Ar[0], Ur[0], Ur[1])
    pk(k, Ar[1], Ur[2], Ur[3])
    pk(k, Ar[2], Ui[0], Ui[1])
    pk(k, Ar[3], Ui[2], Ui[3])
    k('buffer_store_dwordx2 %s, %s, %s, %s offen', Ar[0:2], vo, ws, o0)
    k('buffer_store_dwordx2 %s, %s, %s, %s offen', Ar[2:4], vo, ws, o1)
    finish(k, end)
    return k


def ones_d(k):
    r = k.s()
    k('s_mov_b32 %s, %s', r, fl(1 / D))
    return r


def k2():
    k = Kernel('k2_kernel', 225, 512, lds=16384, nv=128)
    end = begin(k)
    pr, pi, pws = ptr(k, A_WR), ptr(k, A_WI), ptr(k, A_WS)
    w = wave_id(k)
    n, g, t, t2, l = [k.v() for _ in range(5)]
    k('v_and_b32 %s, 15, v0', n)
    k('v_bfe_u32 %s, v0, 4, 2', g)
    k('v_and_b32 %s, 63, v0', l)
    k('v_lshlrev_b32 %s, 4, v0', t)
    ws = k.srd(pws, WSEND)
    so = k.s()
    k('s_lshl_b32 %s, %s, 10', so, w)
    k('s_mov_b32 m0, %s', so)
    k('s_lshl_b32 %s, s2, 13', so)
    k('s_add_u32 %s, %s, 0x%x', so, so, T1)
    k('buffer_load_dwordx4 %s, %s, %s offen lds ;W:u', t, ws, so)
    rr, ri = k.srd(pr, S * 450), k.srd(pi, S * 450)
    k1_, ct, par, mt = k.s(), k.s(), k.s(), k.s()
    k('s_and_b32 %s, s2, 15', k1_)
    k('s_lshr_b32 %s, s2, 4', ct)
    k('s_cmp_ge_u32 %s, 7', ct)
    k('s_cselect_b32 %s, 1, 0', par)
    k('s_cselect_b32 %s, 7, 0', mt)
    k('s_sub_u32 %s, %s, %s', mt, ct, mt)
    wo, sc = k.v(), k.v()
    ex, dn = k.label('ex'), k.label('dn')
    ob, ost = k.s(), k.s()
    k('s_cmp_eq_u32 s2, 224')
    k('s_cbranch_scc1 %s', ex)
    k('s_lshl_b32 %s, %s, 5', so, mt)
    k('s_add_u32 %s, %s, %s', so, so, par)
    k('v_lshl_add_u32 %s, %s, 1, %s', t, n, so)
    k('s_mul_i32 %s, %s, 450', so, k1_)
    k('v_lshl_add_u32 %s, %s, 1, %s', wo, t, so)
    k('v_mov_b32 %s, %s', sc, fl(2.0 / (S * D)))
    k('v_mov_b32 %s, %s', t2, fl(1.0 / (S * D)))
    k('v_cmp_eq_u32 vcc, 0, %s', t)
    k('v_cndmask_b32 %s, %s, %s, vcc', sc, sc, t2)
    k('s_lshl_b32 %s, %s, 10', ob, ct)
    k('s_lshl_b32 %s, %s, 6', so, k1_)
    k('s_add_u32 %s, %s, %s', ob, ob, so)
    k('s_add_u32 %s, %s, 0x%x', ob, ob, T2)
    k('s_mov_b32 %s, 14336', ost)
    k('s_branch %s', dn)
    k.place(ex)
    k('v_mul_u32_u24 %s, 450, %s', wo, n)
    k('v_add_u32 %s, 448, %s', wo, wo)
    k('v_mov_b32 %s, %s', sc, fl(1.0 / (S * D)))
    k('s_mov_b32 %s, 0x%x', ob, T2X)
    k('s_mov_b32 %s, 64', ost)
    k.place(dn)
    k('v_mul_u32_u24 %s, %d, %s', t, 4 * 7200, g)
    k('v_add_u32 %s, %s, %s', wo, wo, t)
    k('s_mul_i32 %s, %s, %d', so, w, 16 * 7200)
    Wr, Wi = k.v(4), k.v(4)
    for r in range(4):
        k('buffer_load_ushort %s, %s, %s, %s offen', Wr[r], wo, rr, so)
        k('buffer_load_ushort %s, %s, %s, %s offen', Wi[r], wo, ri, so)
        if r < 3:
            k('s_add_u32 %s, %s, 7200', so, so)
    C, Sn = k.v(16, 2), k.v(16, 2)
    rf, b0 = k.v(), k.v()
    k('s_lshl_b32 %s, %s, 4', so, w)
    k('v_add_u32 %s, %s, %s', t, so, n)
    vo = k.v()
    k('v_mul_lo_u32 %s, %s, %s', vo, t, ost)
    k('v_lshl_add_u32 %s, %s, 3, %s', vo, g, vo)
    k('v_cvt_f32_u32 %s, %s', rf, t)
    k('v_mul_f32 %s, %s, %s', rf, fl(1 / 128), rf)
    k('v_cvt_f32_u32 %s, %s', t, g)
    k('v_mul_f32 %s, 4.0, %s', t, t)
    k('v_mul_f32 %s, %s, %s', b0, rf, t)
    an, cs, sn = k.v(8), k.v(8), k.v(8)
    for tau in range(4):
        for i in range(8):
            kk = 32 * tau + 16 * (i >> 2) + (i & 3)
            if kk:
                k('v_fmamk_f32 %s, %s, %s, %s', an[i], rf, fl(kk), b0)
            k('v_cos_f32 %s, %s', cs[i], an[i] if kk else b0)
            k('v_sin_f32 %s, %s', sn[i], an[i] if kk else b0)
        for i in range(4):
            pk(k, C[4 * tau + i], cs[2 * i], cs[2 * i + 1])
            pk(k, Sn[4 * tau + i], sn[2 * i], sn[2 * i + 1])
    k.free(an, cs, sn, rf, b0)
    for r in range(4):
        lo(k, Wr[r], Wr[r])
        lo(k, Wi[r], Wi[r])
        k('v_mul_f32 %s, %s, %s', Wr[r], Wr[r], sc)
        k('v_mul_f32 %s, %s, %s', Wi[r], Wi[r], sc)
    B0, B1 = k.v(), k.v()
    k('v_lshrrev_b32 %s, 2, %s', t, l)
    k('v_lshlrev_b32 %s, 6, %s', B0, t)
    k('v_and_b32 %s, 3, %s', t, l)
    k('v_lshl_add_u32 %s, %s, 3, %s', B0, t, B0)
    k('v_and_b32 %s, 1, %s', t, g)
    k('v_lshl_add_u32 %s, %s, 5, %s', B0, t, B0)
    k('v_xor_b32 %s, 32, %s', B1, B0)
    ya = k.v()
    k('s_lshr_b32 %s, %s, 1', so, w)
    k('s_lshl_b32 %s, %s, 10', so, so)
    k('s_and_b32 %s, %s, 1', par, w)
    k('s_lshl_b32 %s, %s, 3', par, par)
    k('s_add_u32 %s, %s, %s', so, so, par)
    k('v_lshlrev_b32 %s, 4, %s', l, l)
    k('v_add_u32 %s, %s, %s', ya, so, l)
    k('s_barrier ;R:u')
    U = k.v(32, 2)
    for tau in range(4):
        for comp in range(2):
            for h in range(2):
                o = 16 * comp + 4 * tau + 2 * h
                k('ds_read_b64_tr_b16 %s, %s offset:%d', U[o:o + 2], B1 if comp else B0, tau * 2048 + h * 1024)
    Xr, Xa, Xb = k.v(4, 2), k.v(4, 2), k.v(4, 2)
    mm = 'v_mfma_f32_16x16x32_bf16 %s, %s, %s, %s'
    for tau in range(4):
        sl = slice(4 * tau, 4 * tau + 4)
        si = slice(16 + 4 * tau, 16 + 4 * tau + 4)
        k(mm, Xr, C[sl], U[sl], Xr if tau else 0)
        k(mm, Xb, Sn[sl], U[sl], Xb if tau else 0)
        k(mm, Xa, C[sl], U[si], Xa if tau else 0)
        k(mm, Xr, Sn[sl], U[si], Xr)
    Y = k.v(8, 2)
    for r in range(4):
        k('v_sub_f32 %s, %s, %s', Xa[r], Xa[r], Xb[r])
    for r in range(4):
        k('v_mul_f32 %s, %s, %s', Y[r], Xr[r], Wr[r])
        k('v_mul_f32 %s, %s, %s', Y[4 + r], Xr[r], Wi[r])
        k('v_fma_f32 %s, -%s, %s, %s', Y[r], Xa[r], Wi[r], Y[r])
        k('v_fma_f32 %s, %s, %s, %s', Y[4 + r], Xa[r], Wr[r], Y[4 + r])
    pk(k, Y[0], Y[0], Y[1])
    pk(k, Y[1], Y[2], Y[3])
    pk(k, Y[2], Y[4], Y[5])
    pk(k, Y[3], Y[6], Y[7])
    k('ds_write_b64 %s, %s offset:8192 ;W:y', ya, Y[0:2])
    k('ds_write_b64 %s, %s offset:12288 ;W:y', ya, Y[2:4])
    k('s_barrier ;R:y')
    for tau in range(4):
        for comp in range(2):
            o = 16 * comp + 4 * tau
            k('ds_read_b128 %s, %s offset:%d', U[o:o + 4], l, 8192 + comp * 4096 + tau * 1024)
    for tau in range(4):
        sl = slice(4 * tau, 4 * tau + 4)
        si = slice(16 + 4 * tau, 16 + 4 * tau + 4)
        k(mm, Xa, U[sl], C[sl], Xa if tau else 0)
        k(mm, Xr, U[sl], Sn[sl], Xr if tau else 0)
        k(mm, Xb, U[si], Sn[sl], Xb if tau else 0)
        k(mm, Xr, U[si], C[sl], Xr)
    for r in range(4):
        k('v_sub_f32 %s, %s, %s', Xa[r], Xa[r], Xb[r])
    pk(k, Y[0], Xa[0], Xa[1])
    pk(k, Y[1], Xa[2], Xa[3])
    pk(k, Y[2], Xr[0], Xr[1])
    pk(k, Y[3], Xr[2], Xr[3])
    k('buffer_store_dwordx2 %s, %s, %s, %s offen', Y[0:2], vo, ws, ob)
    k('buffer_store_dwordx2 %s, %s, %s, %s offen offset:32', Y[2:4], vo, ws, ob)
    finish(k, end)
    return k


def k3():
    BF, STAT = 14336, 14336 + 16384
    k = Kernel('k3_kernel', 128, 448, lds=STAT + 1024, nv=256)
    end = begin(k)
    px, pws = ptr(k, A_X), ptr(k, A_WS)
    w = wave_id(k)
    n, g, t, t2, l = [k.v() for _ in range(5)]
    k('v_and_b32 %s, 15, v0', n)
    k('v_bfe_u32 %s, v0, 4, 2', g)
    k('v_and_b32 %s, 63, v0', l)
    ws = k.srd(pws, WSEND)
    rx = k.srd(px, S * D * 2)
    so, s1_ = k.s(), k.s()
    l16 = k.v()
    k('v_lshlrev_b32 %s, 4, %s', l16, l)
    k('s_lshl_b32 %s, %s, 10', s1_, w)
    k('s_mov_b32 m0, %s', s1_)
    k('s_mul_i32 %s, s2, 14336', so)
    k('s_add_u32 %s, %s, %s', so, so, s1_)
    k('s_add_u32 %s, %s, 0x%x', so, so, T2)
    k('buffer_load_dwordx4 %s, %s, %s offen lds ;W:v', l16, ws, so)
    k('s_add_u32 %s, %s, 7168', s1_, s1_)
    k('s_mov_b32 m0, %s', s1_)
    k('s_add_u32 %s, %s, 7168', so, so)
    k('buffer_load_dwordx4 %s, %s, %s offen lds ;W:v', l16, ws, so)
    XN = k.v(4)
    k('v_lshlrev_b32 %s, 2, %s', t, g)
    k('s_lshl_b32 %s, s2, 6', so)
    k('s_add_u32 %s, %s, 0x%x', so, so, T2X)
    for i, o in enumerate((0, 32, 16, 48)):
        k('buffer_load_dword %s, %s, %s, %s offen offset:%d', XN[i], t, ws, so, o)
    vA, vB, mA, mB = [k.v() for _ in range(4)]
    k('s_lshl_b32 %s, %s, 5', so, w)
    k('v_lshl_add_u32 %s, %s, 3, %s', mA, g, so)
    k('v_sub_u32 %s, 440, %s', mB, mA)
    k('v_mul_u32_u24 %s, %d, %s', t, 128 * 896, n)
    k('v_add_u32 %s, %s, %s', vA, t, mA)
    k('v_add_u32 %s, %s, %s', vB, t, mB)
    xo = k.s()
    k('s_mul_i32 %s, s2, 896', xo)
    X = k.v(8, 2)
    segs = lambda a, b: ((a, 0), (a, 448), (b, 0), (b, 448))
    for qd, (va, o) in enumerate(segs(vA, vB)):
        k('buffer_load_dwordx2 %s, %s, %s, %s offen offset:%d', X[2 * qd:2 * qd + 2], va, rx, xo, o)
    M = k.v(24, 2)
    mo = k.s()
    k('s_mov_b32 %s, %d', mo, MOD + 2 * 896)
    for sec in range(3):
        for qd, (va, o) in enumerate(segs(mA, mB)):
            k('buffer_load_dwordx2 %s, %s, %s, %s offen offset:%d', M[8 * sec + 2 * qd:8 * sec + 2 * qd + 2], va, ws,
              mo, sec * 896 + o)
    k.free(mA, mB)
    G = k.v(8, 2)
    sf, b0 = k.v(), k.v()
    an = k.v(8)
    k('v_lshl_add_u32 %s, %s, 7, s2', t, n)
    k('v_cvt_f32_u32 %s, %s', sf, t)
    k('v_mul_f32 %s, %s, %s', sf, fl(1 / 2048), sf)
    gf = k.v()
    k('v_cvt_f32_u32 %s, %s', gf, g)
    k('v_add_f32 %s, %s, %s', t, gf, gf)
    k('v_mul_f32 %s, %s, %s', b0, sf, t)
    for j, kk in enumerate((0, 1, 8, 9)):
        if kk:
            k('v_fmamk_f32 %s, %s, %s, %s', t, sf, fl(kk), b0)
        k('v_cos_f32 %s, %s', an[j], t if kk else b0)
        k('v_sin_f32 %s, %s', an[4 + j], t if kk else b0)
    for j in range(4):
        pk(k, G[j], an[j], '-%s' % an[4 + j])
        pk(k, G[4 + j], an[4 + j], an[j])
    CM = [k.v(14, 2) for _ in range(4)]
    xa = sf
    k('s_lshl_b32 %s, %s, 5', so, w)
    k('s_add_u32 %s, %s, 1', so, so)
    k('v_lshl_add_u32 %s, %s, 1, %s', t, n, so)
    k('v_cvt_f32_u32 %s, %s', xa, t)
    k('v_mul_f32 %s, %s, %s', xa, fl(1 / 896), xa)
    k('v_mul_f32 %s, %s, %s', t, fl(8.0), gf)
    k('v_mul_f32 %s, %s, %s', b0, xa, t)
    k('v_mul_f32 %s, %s, %s', t2, fl(224.0), xa)
    k('v_cmp_eq_u32 vcc, 0, %s', g)
    s0 = k.v()
    k('v_cndmask_b32 %s, %s, %s, vcc', s0, b0, t2)
    ao, r4 = k.v(2), [k.v(2) for _ in range(4)]
    for tau in range(4):
        ni = 8 if tau < 3 else 4
        for ip in range(ni // 2):
            for e in range(2):
                i = 2 * ip + e
                kk = 2 * (32 * tau + 16 * (i >> 2) + (i & 3))
                if kk:
                    k('v_fmamk_f32 %s, %s, %s, %s', an[e], xa, fl(kk), b0)
                src = an[e] if kk else b0
                k('v_add_f32 %s, %s, %s', ao[e], src, xa)
                k('v_cos_f32 %s, %s', r4[0][e], src)
                k('v_cos_f32 %s, %s', r4[1][e], ao[e])
                k('v_sin_f32 %s, %s', r4[2][e], src if kk else s0)
                k('v_sin_f32 %s, %s', r4[3][e], ao[e])
            for m in range(4):
                pk(k, CM[m][4 * tau + ip], r4[m][0], r4[m][1])
    k.free(ao, *r4)
    k.free(an, sf, b0, gf, s0)
    ta = k.v()
    k('v_lshlrev_b32 %s, 3, %s', ta, l)
    k('s_lshl_b32 %s, %s, 10', so, w)
    k('v_add_u32 %s, %s, %s', ta, so, ta)
    V = k.v(12, 2)
    k('ds_read_b64_tr_b16 %s, %s ;R:v', V[0:2], ta)
    k('ds_read_b64_tr_b16 %s, %s offset:512', V[2:4], ta)
    k('ds_read_b64_tr_b16 %s, %s offset:7168', V[4:6], ta)
    k('ds_read_b64_tr_b16 %s, %s offset:7680', V[6:8], ta)
    sl, sh = k.s(), k.s()
    k('s_mov_b32 %s, 0x05040100', sl)
    k('s_mov_b32 %s, 0x07060302', sh)
    k('v_perm_b32 %s, %s, %s, %s', V[8], XN[1], XN[0], sl)
    k('v_perm_b32 %s, %s, %s, %s', V[9], XN[1], XN[0], sh)
    k('v_perm_b32 %s, %s, %s, %s', V[10], XN[3], XN[2], sl)
    k('v_perm_b32 %s, %s, %s, %s', V[11], XN[3], XN[2], sh)
    k('s_lshl_b32 %s, %s, 4', so, w)
    k('v_add_u32 %s, %s, %s', t, so, n)
    k('v_cmp_eq_u32 vcc, 0, %s', t)
    for j in range(4):
        k('v_cndmask_b32 %s, %s, %s, vcc', V[8 + j], V[j], V[8 + j])
    Bq = [k.v(4, 2) for _ in range(4)]
    mm = 'v_mfma_f32_16x16x32_bf16 %s, %s, %s, %s'
    k(mm, Bq[0], V[0:4], G[0:4], 0)
    k(mm, Bq[1], V[4:8], G[0:4], 0)
    k(mm, Bq[3], V[4:8], G[4:8], 0)
    k(mm, Bq[2], V[8:12], G[4:8], 0)
    wa = k.v()
    k('s_lshr_b32 %s, %s, 1', so, w)
    k('s_lshl_b32 %s, %s, 10', so, so)
    k('s_and_b32 %s, %s, 1', s1_, w)
    k('s_lshl_b32 %s, %s, 3', s1_, s1_)
    k('s_add_u32 %s, %s, %s', so, so, s1_)
    k('v_add_u32 %s, %s, %s', wa, so, l16)
    for m in (0, 1, 3, 2):
        pk(k, Bq[m][0], Bq[m][0], Bq[m][1])
        pk(k, Bq[m][1], Bq[m][2], Bq[m][3])
        k('ds_write_b64 %s, %s offset:%d ;W:b', wa, Bq[m][0:2], BF + m * 4096)
    k.free(V, G, XN, ta, wa)
    k('s_barrier ;R:b')
    Dt = k.v(56, 2)
    for m in range(4):
        for tau in range(3):
            k('ds_read_b128 %s, %s offset:%d', Dt[14 * m + 4 * tau:14 * m + 4 * tau + 4], l16, BF + m * 4096 + tau * 1024)
        k('ds_read_b64 %s, %s offset:%d', Dt[14 * m + 12:14 * m + 14], l16, BF + m * 4096 + 3072)
    for m in range(4):
        for tau in range(3):
            k(mm, Bq[m], CM[m][4 * tau:4 * tau + 4], Dt[14 * m + 4 * tau:14 * m + 4 * tau + 4], Bq[m] if tau else 0)
        k('v_mfma_f32_16x16x16_bf16 %s, %s, %s, %s', Bq[m], CM[m][12:14], Dt[14 * m + 12:14 * m + 14], Bq[m])
    k.free(Dt, *CM)
    H = [[k.v() for _ in range(4)] for _ in range(4)]
    GA = [[k.v() for _ in range(4)] for _ in range(4)]
    for qd in range(4):
        unpack4(k, H[qd], X[2 * qd:2 * qd + 2], qd >= 2)
        unpack4(k, GA[qd], M[2 * qd:2 * qd + 2], qd >= 2)
    E, O, P, Q = Bq
    al, be = k.v(4), k.v(4)
    for r in range(4):
        k('v_add_f32 %s, %s, %s', al[r], E[r], O[r])
        k('v_sub_f32 %s, %s, %s', be[r], E[r], O[r])
    for r in range(4):
        k('v_add_f32 %s, %s, %s', E[r], P[r], Q[r])
        k('v_sub_f32 %s, %s, %s', O[r], P[r], Q[r])
    for r in range(4):
        k('v_sub_f32 %s, %s, %s', P[r], be[r], O[r])
        k('v_sub_f32 %s, %s, %s', Q[r], al[r], E[r])
        k('v_add_f32 %s, %s, %s', al[r], al[r], E[r])
        k('v_add_f32 %s, %s, %s', be[r], be[r], O[r])
    st = k.v(2, 2)
    for qd, y in enumerate((P, Q, al, be)):
        for r in range(4):
            k('v_fmac_f32 %s, %s, %s', H[qd][r], GA[qd][r], y[r])
    first = True
    for qd in range(4):
        for r in range(4):
            if first:
                k('v_mov_b32 %s, %s', st[0], H[qd][r])
                k('v_mul_f32 %s, %s, %s', st[1], H[qd][r], H[qd][r])
                first = False
            else:
                k('v_add_f32 %s, %s, %s', st[0], st[0], H[qd][r])
                k('v_fmac_f32 %s, %s, %s', st[1], H[qd][r], H[qd][r])
    for wch in (16, 32):
        swap_add(k, st[0], t, wch)
        swap_add(k, st[1], t2, wch)
    k('s_lshl_b32 %s, %s, 7', so, w)
    sa_ = k.v()
    k('v_lshlrev_b32 %s, 3, %s', sa_, n)
    k('v_add_u32 %s, %s, %s', t, so, sa_)
    k('ds_write_b64 %s, %s offset:%d ;W:s', t, st, STAT)
    k('s_add_u32 %s, %s, 0x%x', xo, xo, X1)
    for qd, (va, o) in enumerate(segs(vA, vB)):
        h = H[qd] if qd < 2 else H[qd][::-1]
        pk(k, X[2 * qd], h[0], h[1])
        pk(k, X[2 * qd + 1], h[2], h[3])
        k('buffer_store_dwordx2 %s, %s, %s, %s offen offset:%d', X[2 * qd:2 * qd + 2], va, ws, xo, o)
    k('s_barrier ;R:s')
    PS = k.v(14, 2)
    for j in range(7):
        k('ds_read_b64 %s, %s offset:%d', PS[2 * j:2 * j + 2], sa_, STAT + j * 128)
    sb = [[k.v() for _ in range(4)] for _ in range(4)]
    for qd in range(4):
        unpack4(k, sb[qd], M[8 + 2 * qd:8 + 2 * qd + 2], qd >= 2)
        unpack4(k, GA[qd], M[16 + 2 * qd:16 + 2 * qd + 2], qd >= 2)
    for j in range(1, 7):
        k('v_add_f32 %s, %s, %s', PS[0], PS[0], PS[2 * j])
        k('v_add_f32 %s, %s, %s', PS[1], PS[1], PS[2 * j + 1])
    sm, sq = PS[0], PS[1]
    k('v_mul_f32 %s, %s, %s', sm, fl(1 / D), sm)
    k('v_mul_f32 %s, %s, %s', t, sm, sm)
    k('v_fma_f32 %s, %s, %s, -%s', sq, sq, ones_d(k), t)
    k('v_max_f32 %s, 0, %s', sq, sq)
    k('v_add_f32 %s, %s, %s', sq, fl(1e-5), sq)
    k('v_rsq_f32 %s, %s', sq, sq)
    k('v_mul_f32 %s, -%s, %s', sm, sm, sq)
    for qd in range(4):
        for r in range(4):
            k('v_fma_f32 %s, %s, %s, %s', H[qd][r], H[qd][r], sq, sm)
        for r in range(4):
            k('v_fma_f32 %s, %s, %s, %s', H[qd][r], H[qd][r], GA[qd][r], sb[qd][r])
    k('v_lshlrev_b32 %s, 9, %s', t, g)
    k('v_lshl_add_u32 %s, %s, 4, %s', t, n, t)
    k('s_lshr_b32 %s, s2, 1', so)
    k('s_mul_i32 %s, %s, %d', so, so, 28 * 1024)
    k('s_and_b32 %s, s2, 1', s1_)
    k('s_lshl_b32 %s, %s, 8', s1_, s1_)
    k('s_add_u32 %s, %s, %s', so, so, s1_)
    k('s_lshl_b32 %s, %s, 12', s1_, w)
    k('s_add_u32 %s, %s, %s', so, so, s1_)
    k('s_add_u32 %s, %s, 0x%x', so, so, H2F)
    Fo = k.v(8, 4)
    for h, (q0, q1) in enumerate(((0, 1), (3, 2))):
        pk(k, Fo[4 * h + 0], H[q0][0], H[q0][1])
        pk(k, Fo[4 * h + 1], H[q0][2], H[q0][3])
        pk(k, Fo[4 * h + 2], H[q1][0], H[q1][1])
        pk(k, Fo[4 * h + 3], H[q1][2], H[q1][3])
        k('buffer_store_dwordx4 %s, %s, %s, %s offen offset:%d', Fo[4 * h:4 * h + 4], t, ws, so, 2048 * h)
    finish(k, end)
    return k


def silu_ops(k, acc, tmp, outp):
    ops = []
    for j in range(0, 16, 2):
        a0, a1, t0, t1 = acc[j], acc[j + 1], tmp[j % 4], tmp[j % 4 + 1]
        ops.append(lambda a0=a0, t0=t0: k('v_mul_f32 %s, %s, %s', t0, fl(-LOG2E), a0))
        ops.append(lambda a1=a1, t1=t1: k('v_mul_f32 %s, %s, %s', t1, fl(-LOG2E), a1))
        ops.append(lambda t0=t0: k('v_exp_f32 %s, %s', t0, t0))
        ops.append(lambda t1=t1: k('v_exp_f32 %s, %s', t1, t1))
        ops.append(lambda t0=t0: k('v_add_f32 %s, 1.0, %s', t0, t0))
        ops.append(lambda t1=t1: k('v_add_f32 %s, 1.0, %s', t1, t1))
        ops.append(lambda t0=t0: k('v_rcp_f32 %s, %s', t0, t0))
        ops.append(lambda t1=t1: k('v_rcp_f32 %s, %s', t1, t1))
        ops.append(lambda a0=a0, t0=t0: k('v_mul_f32 %s, %s, %s', t0, a0, t0))
        ops.append(lambda a1=a1, t1=t1: k('v_mul_f32 %s, %s, %s', t1, a1, t1))
        ops.append(lambda j=j, t0=t0, t1=t1: pk(k, outp[j // 2], t0, t1))
    return ops


def k4():
    k = Kernel('k4_kernel', 224, 256, lds=4 * 28 * 1024, nv=256)
    end = begin(k)
    pws = ptr(k, A_WS)
    w = wave_id(k)
    l16 = k.v()
    k('v_and_b32 %s, 63, v0', l16)
    k('v_lshlrev_b32 %s, 4, %s', l16, l16)
    ws = k.srd(pws, WSEND)
    rb, fb, so, sm, wo, ho = [k.s() for _ in range(6)]
    k('s_and_b32 %s, s2, 15', rb)
    k('s_lshr_b32 %s, s2, 4', fb)
    k('s_mul_i32 %s, %s, 7168', sm, w)
    k('s_mul_i32 %s, %s, %d', so, rb, 4 * 28672)
    k('s_add_u32 %s, %s, %s', so, so, sm)
    k('s_add_u32 %s, %s, 0x%x', so, so, H2F)
    k('s_lshl_b32 %s, %s, 2', fb, fb)
    k('s_add_u32 %s, %s, %s', fb, fb, w)
    k('s_mul_i32 %s, %s, 28672', wo, fb)
    k('s_add_u32 %s, %s, 0x%x', wo, wo, W1F)
    k('s_mul_i32 %s, %s, %d', ho, rb, 4 * 112 * 1024)
    k('s_lshl_b32 %s, %s, 11', fb, fb)
    k('s_add_u32 %s, %s, %s', ho, ho, fb)
    k('s_add_u32 %s, %s, 0x%x', ho, ho, HF)

    def dma(u):
        for part, cnt in ((0, 4), (4, 3)):
            k('s_mov_b32 m0, %s', sm)
            for j in range(cnt):
                k('buffer_load_dwordx4 %s, %s, %s offen offset:%d lds ;W:h%d', l16, ws, so, j * 1024, u)
            step = 4096 if part == 0 else 28672 - 4096
            k('s_add_u32 %s, %s, %d', sm, sm, step)
            k('s_add_u32 %s, %s, %d', so, so, step)

    W = k.v(112, 4)
    dma(0)
    for j in range(28):
        k('buffer_load_dwordx4 %s, %s, %s, %s offen offset:%d', W[4 * j:4 * j + 4], l16, ws, wo, (j % 4) * 1024)
        if j % 4 == 3:
            k('s_add_u32 %s, %s, 4096', wo, wo)
    for u in range(1, 4):
        dma(u)
    acc = [k.v(16, 4), k.v(16, 4)]
    tmp = k.v(4)
    outp = k.v(8, 4)
    NB = 6
    ring = [k.v(4, 4) for _ in range(NB)]
    la = [l16, k.v()]
    k('v_add_u32 %s, 0x%x, %s', la[1], 2 * 28672, l16)
    pend = []

    def stores():
        k('buffer_store_dwordx4 %s, %s, %s, %s offen', outp[0:4], l16, ws, ho)
        k('buffer_store_dwordx4 %s, %s, %s, %s offen offset:1024', outp[4:8], l16, ws, ho)
        k('s_add_u32 %s, %s, %d', ho, ho, 112 * 1024)

    for u in range(4):
        k('s_barrier ;R:h%d', u)
        rd = lambda j: k('ds_read_b128 %s, %s offset:%d', ring[j % NB], la[u >> 1], (u & 1) * 28672 + j * 1024)
        for j in range(NB - 1):
            rd(j)
        a = acc[u & 1]
        for j in range(28):
            if j + NB - 1 < 28:
                rd(j + NB - 1)
            k('v_mfma_f32_32x32x16_bf16 %s, %s, %s, %s', a, W[4 * j:4 * j + 4], ring[j % NB], a if j else 0)
            if j >= 2:
                for _ in range(4):
                    if pend:
                        pend.pop(0)()
        while pend:
            pend.pop(0)()
        pend = silu_ops(k, a, tmp, outp) + [stores]
    while pend:
        pend.pop(0)()
    finish(k, end)
    return k


def k5():
    PW = 64 * 272
    k = Kernel('k5_kernel', 224, 256, lds=4 * PW, nv=256, na=64)
    end = begin(k)
    pws, po = ptr(k, A_WS), ptr(k, A_OUT)
    w = wave_id(k)
    l16, t, t2 = k.v(), k.v(), k.v()
    k('v_and_b32 %s, 63, v0', l16)
    k('v_lshlrev_b32 %s, 4, %s', l16, l16)
    ws = k.srd(pws, WSEND)
    ro = k.srd(po, S * D * 2)
    rb, db, h0, h1, w0, w1, so = [k.s() for _ in range(7)]
    k('s_and_b32 %s, s2, 31', rb)
    k('s_lshr_b32 %s, s2, 5', db)
    k('s_mul_i32 %s, %s, 28672', so, w)
    k('s_mul_i32 %s, %s, %d', h0, rb, 2 * 112 * 1024)
    k('s_add_u32 %s, %s, %s', h0, h0, so)
    k('s_add_u32 %s, %s, 0x%x', h0, h0, HF)
    k('s_add_u32 %s, %s, %d', h1, h0, 112 * 1024)
    k('s_mul_i32 %s, %s, %d', w0, db, 2 * 112 * 1024)
    k('s_add_u32 %s, %s, %s', w0, w0, so)
    k('s_add_u32 %s, %s, 0x%x', w0, w0, W2F)
    k('s_add_u32 %s, %s, %d', w1, w0, 112 * 1024)
    NB = 12
    ring = [k.v(16, 4) for _ in range(NB)]

    def ld(j):
        r = ring[j % NB]
        for q, sb in enumerate((w0, h0, h1, w1)):
            k('buffer_load_dwordx4 %s, %s, %s, %s offen offset:%d', r[4 * q:4 * q + 4], l16, ws, sb, (j % 4) * 1024)
        if j % 4 == 3:
            for sb in (w0, h0, h1, w1):
                k('s_add_u32 %s, %s, 4096', sb, sb)

    for j in range(NB):
        ld(j)
    xo, XR, GB = k.v(), k.v(8, 4), k.v(8, 4)
    k('v_bfe_u32 %s, v0, 2, 4', t)
    k('v_lshlrev_b32 %s, 7, %s', t, t)
    k('s_lshl_b32 %s, %s, 2', so, rb)
    k('s_add_u32 %s, %s, %s', so, so, w)
    k('v_add_u32 %s, %s, %s', t, so, t)
    k('v_mul_u32_u24 %s, 896, %s', xo, t)
    k('v_and_b32 %s, 3, v0', t)
    k('v_lshlrev_b32 %s, 5, %s', t, t)
    k('s_lshl_b32 %s, %s, 7', so, db)
    k('v_add_u32 %s, %s, %s', t2, so, t)
    k('v_add_u32 %s, %s, %s', xo, xo, t2)
    acc = [k.a(16, 4) for _ in range(4)]
    mm = 'v_mfma_f32_32x32x16_bf16 %s, %s, %s, %s'
    xs = k.s()
    for j in range(28):
        r = ring[j % NB]
        k(mm, acc[0], r[0:4], r[4:8], acc[0] if j else 0)
        k(mm, acc[1], r[0:4], r[8:12], acc[1] if j else 0)
        k(mm, acc[2], r[12:16], r[4:8], acc[2] if j else 0)
        k(mm, acc[3], r[12:16], r[8:12], acc[3] if j else 0)
        if j + NB < 28:
            ld(j + NB)
        if j == 28 - NB:
            k('s_mov_b32 %s, 0x%x', xs, X1)
            k('buffer_load_dwordx4 %s, %s, %s, %s offen', XR[0:4], xo, ws, xs)
            k('buffer_load_dwordx4 %s, %s, %s, %s offen offset:16', XR[4:8], xo, ws, xs)
            k('s_mov_b32 %s, 0x%x', xs, MOD + 5 * 896)
            k('buffer_load_dwordx4 %s, %s, %s, %s offen', GB[0:4], t2, ws, xs)
            k('buffer_load_dwordx4 %s, %s, %s, %s offen offset:16', GB[4:8], t2, ws, xs)
    wa, ra = k.v(), k.v()
    k('v_and_b32 %s, 31, v0', t)
    k('v_mul_u32_u24 %s, 272, %s', wa, t)
    k('v_bfe_u32 %s, v0, 5, 1', t)
    k('v_lshl_add_u32 %s, %s, 4, %s', wa, t, wa)
    k('s_mul_i32 %s, %s, %d', so, w, PW)
    k('v_add_u32 %s, %s, %s', wa, so, wa)
    k('v_lshrrev_b32 %s, 2, v0', t)
    k('v_mul_u32_u24 %s, 272, %s', ra, t)
    k('v_and_b32 %s, 3, v0', t)
    k('v_lshl_add_u32 %s, %s, 6, %s', ra, t, ra)
    for a in range(4):
        nt, mt = a >> 1, a & 1
        for q in range(4):
            k('ds_write_b128 %s, %s offset:%d ;W:p', wa, acc[a][4 * q:4 * q + 4], mt * 32 * 272 + nt * 128 + q * 32)
    k('s_barrier ;R:p')
    P = [ring[0], ring[1], ring[2], ring[3]]
    for p in range(4):
        for j in range(4):
            k('ds_read_b128 %s, %s offset:%d', P[p][4 * j:4 * j + 4], ra, p * PW + j * 16)
    xf, gf = ring[4], ring[5]
    for j in range(16):
        (hi if j & 1 else lo)(k, xf[j], XR[j // 2])
        (hi if j & 1 else lo)(k, gf[j], GB[j // 2])
    for j in range(16):
        k('v_add_f32 %s, %s, %s', P[0][j], P[0][j], P[1][j])
    for j in range(16):
        k('v_add_f32 %s, %s, %s', P[2][j], P[2][j], P[3][j])
    for j in range(16):
        k('v_add_f32 %s, %s, %s', P[0][j], P[0][j], P[2][j])
        k('v_fmac_f32 %s, %s, %s', xf[j], gf[j], P[0][j])
    for j in range(8):
        pk(k, XR[j], xf[2 * j], xf[2 * j + 1])
    k('buffer_store_dwordx4 %s, %s, %s, 0 offen', XR[0:4], xo, ro)
    k('buffer_store_dwordx4 %s, %s, %s, 0 offen offset:16', XR[4:8], xo, ro)
    finish(k, end)
    return k


def header():
    src = open('adaLN_cond__spectral_gfnet__dense_activation_silu__prompt.s.ref').read().split('\n')
    return [l for l in src if l.startswith(';') and '@launch' not in l and 'Override' not in l and 'grid=ceil' not in l]


if __name__ == '__main__':
    ks = [k0(), k1(), k2(), k3(), k4(), k5()]
    out = sys.argv[1] if len(sys.argv) > 1 else 'v1.s'
    open(out, 'w').write(assemble(ks, header()))
    for k in ks:
        print(k.name, 'vgpr', k.V.high, 'sgpr', k.S.high, 'lines', len(k.lines))
```
